```python
import torch

def _softmax(x, axis=-1):
    return torch.softmax(x, dim=axis)
def _gelu(x):
    return torch.nn.functional.gelu(x, approximate="tanh")
def _silu(x):
    return torch.nn.functional.silu(x)
def _sigmoid(x):
    return torch.sigmoid(x)
def _layernorm(x, axis=-1, eps=1e-5):
    m = x.mean(dim=axis, keepdim=True)
    v = x.var(dim=axis, keepdim=True, unbiased=False)
    return (x - m) / torch.sqrt(v + eps)
def _scatter_add(tgt, idx, src, axis=0):
    return tgt.clone().index_add_(axis, idx, src)
def _segment_sum(src, seg, n):
    out = torch.zeros((n,) + src.shape[1:], dtype=src.dtype)
    return out.index_add_(0, seg, src)
def _pad(x, pw):
    flat = tuple(v for pair in reversed(pw) for v in pair)
    return torch.nn.functional.pad(x, flat)

kernel_name = 'standalone__gqa_softmax__sampling'

def setup_inputs():

    _w = (lambda a: (lambda t: t.to(torch.bfloat16) if t.is_floating_point() else t)(torch.as_tensor(a)))
    B, Hq, Hkv, Sq, Sk, D = 8, 32, 8, 32, 8192, 128
    return {
        "q": _w((lambda *s: torch.randn(*s, dtype=torch.bfloat16) * 0.8)(B, Hq, Sq, D)),
        "k": _w((lambda *s: torch.randn(*s, dtype=torch.bfloat16) * 0.8)(B, Hkv, Sk, D)),
        "v": _w((lambda *s: torch.randn(*s, dtype=torch.bfloat16) * 0.05)(B, Hkv, Sk, D)),
    }

def reference(q, k, v):
    B, Hq, Sq, D = q.shape
    Hkv = k.shape[1]
    rep = Hq // Hkv
    k = (lambda x, n, axis: torch.repeat_interleave(x, n, dim=axis))(k, rep, axis=1)
    v = (lambda x, n, axis: torch.repeat_interleave(x, n, dim=axis))(v, rep, axis=1)
    scale = D ** -0.5
    scores = torch.einsum("bhqd,bhkd->bhqk", q, k) * scale
    p = _softmax(scores, axis=-1)
    return torch.einsum("bhqk,bhkd->bhqd", p, v)
```

```python
import re
TRANS = ("v_exp_f32", "v_log_f32", "v_rcp_f32", "v_rsq_f32", "v_sqrt_f32", "v_sin_f32", "v_cos_f32")
def regs(tok):
    tok = tok.strip()
    tok = tok.lstrip("-")
    if tok.startswith("abs(") : tok = tok[4:-1]
    m = re.fullmatch(r"([vas])\[(\d+):(\d+)\]", tok)
    if m: return {(m.group(1), i) for i in range(int(m.group(2)), int(m.group(3)) + 1)}
    m = re.fullmatch(r"([vas])(\d+)", tok)
    if m: return {(m.group(1), int(m.group(2)))}
    if tok == "vcc": return {("s", 106), ("s", 107)}
    if tok == "exec": return {("s", 126), ("s", 127)}
    if tok == "m0": return {("s", 124)}
    return set()
def parse(line):
    line = line.split(";")[0].strip()
    if not line or line.endswith(":") or line.startswith("."): return None
    parts = line.split(None, 1)
    op = parts[0]
    ops = []
    if len(parts) > 1:
        cur = ""; depth = 0
        for ch in parts[1]:
            if ch == "[": depth += 1
            if ch == "]": depth -= 1
            if ch == "," and depth == 0: ops.append(cur.strip()); cur = ""
            else: cur += ch
        ops.append(cur.strip())
        last = ops[-1].split()
        mods = last[1:] if last else []
        if last: ops[-1] = last[0]
    else: mods = []
    d = dict(op=op, text=line, w=set(), r=set(), kind="other", mods=mods)
    if op.startswith("v_mfma"):
        d["kind"] = "mfma"; d["w"] = regs(ops[0]); d["ab"] = regs(ops[1]) | regs(ops[2]); d["c"] = regs(ops[3]); d["r"] = d["ab"] | d["c"]
        d["passes"] = 8 if "32x32" in op else 4
    elif op.startswith("v_cmp"):
        d["kind"] = "valu"; d["w"] = regs(ops[0]); d["r"] = set().union(*[regs(o) for o in ops[1:]])
        if op.startswith("v_cmpx"): d["w"] |= regs("exec")
    elif op.startswith("v_permlane") and "swap" in op:
        d["kind"] = "valu"; d["w"] = regs(ops[0]) | regs(ops[1]); d["r"] = set(d["w"]); d["perm"] = True
    elif op.startswith("v_"):
        d["kind"] = "valu"; d["w"] = regs(ops[0]); d["r"] = set().union(*[regs(o) for o in ops[1:]]) if len(ops) > 1 else set()
        if op.startswith("v_fmac") or op.startswith("v_pk_fmac") or op.startswith("v_writelane"): d["r"] |= d["w"]
        if op.startswith("v_cndmask") and len(ops) == 3: d["r"] |= regs("vcc")
        if op in ("v_add_co_u32", "v_addc_co_u32"): d["w"] |= regs(ops[1])
        d["trans"] = op.replace("_e32", "").replace("_e64", "") in TRANS
        d["rdlane"] = op.startswith("v_readfirstlane") or op.startswith("v_readlane")
        d["dpp"] = any(m.startswith("row_") or m.startswith("quad_perm") or m.startswith("wave_") for m in mods)
    elif op.startswith("ds_read") :
        d["kind"] = "ds"; d["w"] = regs(ops[0]); d["r"] = regs(ops[1])
    elif op.startswith("ds_write"):
        d["kind"] = "ds"; d["r"] = set().union(*[regs(o) for o in ops])
    elif op.startswith("ds_"):
        d["kind"] = "ds"; d["w"] = regs(ops[0]); d["r"] = set().union(*[regs(o) for o in ops[1:]])
    elif op.startswith("buffer_load") or op.startswith("global_load"):
        d["kind"] = "vmem"
        if "lds" in mods or "_lds_" in op:
            d["r"] = set().union(*[regs(o) for o in ops]) | regs("m0"); d["ldsdma"] = True
        else:
            d["w"] = regs(ops[0]); d["r"] = set().union(*[regs(o) for o in ops[1:]])
    elif op.startswith("buffer_store") or op.startswith("global_store") or op.startswith("buffer_atomic") or op.startswith("global_atomic"):
        d["kind"] = "vmem"; d["r"] = set().union(*[regs(o) for o in ops])
        if op.endswith("x4") or op.endswith("x3"):
            d["wide"] = regs(ops[0]) if op.startswith("buffer") else regs(ops[1])
    elif op == "s_nop":
        d["kind"] = "nop"; d["n"] = int(ops[0], 0) + 1
    elif op.startswith("s_"):
        d["kind"] = "salu"
        if ops and not op.startswith("s_cmp") and not op.startswith("s_cbranch") and not op.startswith("s_waitcnt") and op not in ("s_branch", "s_barrier", "s_sleep", "s_setprio", "s_endpgm", "s_setpc_b64"):
            d["w"] = regs(ops[0]); d["r"] = set().union(*[regs(o) for o in ops[1:]]) if len(ops) > 1 else set()
            if "saveexec" in op: d["w"] |= regs("exec")
        else:
            d["r"] = set().union(*[regs(o) for o in ops]) if ops else set()
    return d
def check(lines, name=""):
    ins = [p for p in (parse(l) for l in lines) if p]
    bad = 0
    for i, c in enumerate(ins):
        dist = 0
        for k in range(i - 1, max(-1, i - 24), -1):
            p = ins[k]
            need = 0
            vw = {r for r in p["w"] if r[0] in "va"}; sw = {r for r in p["w"] if r[0] == "s"}
            if p["kind"] == "mfma":
                n = {8: 12, 4: 8}[p["passes"]]
                if c["kind"] == "mfma":
                    if p["w"] & c["ab"]: need = n
                    elif (p["w"] & c["c"]) and p["w"] != c["c"]: need = n - 2
                    elif (p["w"] & c["w"]) and p["w"] != c["c"]: need = max(need, n - 2)
                elif c["kind"] in ("valu", "ds", "vmem"):
                    if p["w"] & (c["r"] | c["w"]): need = n
                    if c["kind"] == "valu" and (p["c"] & c["w"]): need = max(need, {8: 7, 4: 3}[p["passes"]])
            elif p["kind"] == "valu":
                if c["kind"] == "mfma" and (vw & c["r"]): need = 2
                if c["kind"] == "mfma" and (regs("exec") & p["w"]): need = 4
                if c["kind"] == "valu":
                    if p.get("trans") and not c.get("trans") and (vw & c["r"]): need = max(need, 1)
                    if c.get("perm") and (vw & c["r"]): need = max(need, 2)
                    if c.get("rdlane") and (vw & c["r"]): need = max(need, 1)
                    if c.get("dpp") and (vw & c["r"]): need = max(need, 2)
                    if sw & c["r"]: need = max(need, 2)
                if c["kind"] == "vmem" and (sw & c["r"]): need = 5
            elif p["kind"] == "salu":
                if c.get("ldsdma") and (regs("m0") & p["w"]): need = 1
            elif p["kind"] == "vmem":
                if p.get("wide") and (p["wide"] & c["w"]) and c["kind"] in ("valu", "mfma", "ds", "vmem"): need = 2
            if need > dist:
                print("HAZARD %s: need %d have %d:\n   %s\n   %s" % (name, need, dist, p["text"], c["text"]))
                bad += 1
            dist += p.get("n", 1)
            if dist >= 20: break
    return bad
```

```python
import struct, sys, math
import hazard

def f2u(x): return struct.unpack("<I", struct.pack("<f", x))[0]
KN = "standalone__gqa_softmax__sampling_kernel"

HEADER = """; Kernarg layout for this problem (48 bytes, ptrs only, base s[0:1]):
"""

def gen(D=6, T=8.0, diag=False, nt="nt", xs="sc1", xl="sc1", nocompute=False, noexch=False):
    C = math.log2(math.e) / math.sqrt(128.0)
    O, Q, S0, S1, KF, VF, P = 64, 128, 160, 176, 192, 224, 56
    KA, VA, KD, VD = 32, 40, 44, 46
    vm, vmc, vthr, vl0, vl1, vt, vx, vy, vz = 47, 48, 49, 50, 51, 52, 53, 54, 55
    vlane = 1
    sK, sV, sQ, sO, sW, sD = 16, 20, 24, 28, 32, 36
    sw, su, sj, sko, svo, smk, smv, scnt, sc, sT, sx = 40, 41, 42, 43, 44, 45, 46, 47, 48, 49, 52
    sret = 50
    NS = 8
    out = []
    A = out.append
    def vr(a, n): return "v[%d:%d]" % (a, a + n - 1)
    def sr(a, n): return "s[%d:%d]" % (a, a + n - 1)
    stamps = [0]
    def stamp():
        if not diag: return
        k = stamps[0]; stamps[0] += 1
        A("s_memrealtime s[%d:%d]" % (64 + 2 * k, 65 + 2 * k))

    A(HEADER + "; @launch grid=(256,1,1) block=(256,1,1) lds=131072")
    A('.amdgcn_target "amdgcn-amd-amdhsa--gfx950"')
    A(".text"); A(".globl " + KN); A(".p2align 8"); A(".type %s,@function" % KN)
    A(KN + ":")
    pro = []
    A("s_cmp_ge_u32 s2, 256")
    A("s_cbranch_scc1 L_end")
    i0 = len(out)
    stamp()
    A("s_load_dwordx8 s[4:11], s[0:1], 0")
    A("s_load_dwordx4 s[12:15], s[0:1], 32")
    A("v_lshrrev_b32 v2, 6, v0")
    A("v_and_b32 v%d, 63, v0" % vlane)
    A("v_readfirstlane_b32 s%d, v2" % sw)
    A("s_and_b32 s%d, s2, 7" % su)
    A("s_lshr_b32 s%d, s2, 3" % sx)
    A("s_and_b32 s%d, s%d, 3" % (sj, sx))
    A("s_lshr_b32 s%d, s2, 5" % sx)
    A("s_lshl_b32 s%d, s%d, 3" % (sx, sx))
    A("s_add_u32 s%d, s%d, s%d" % (su, su, sx))
    A("v_lshrrev_b32 v3, 4, v%d" % vlane)
    A("v_and_b32 v4, 15, v%d" % vlane)
    A("v_lshlrev_b32 v5, 8, v3")
    A("s_and_b32 s%d, s%d, 1" % (sx, sw))
    A("s_lshl_b32 s%d, s%d, 3" % (sx, sx))
    A("v_or_b32 v6, s%d, v3" % sx)
    A("v_xor_b32 v6, v4, v6")
    A("v_lshl_add_u32 v%d, v6, 4, v5" % KD)
    A("v_xor_b32 v%d, 64, v%d" % (KD + 1, KD))
    A("v_lshlrev_b32 v6, 2, v3")
    A("v_xor_b32 v6, v4, v6")
    A("v_lshl_add_u32 v%d, v6, 4, v5" % VD)
    A("v_and_b32 v7, 31, v%d" % vlane)
    A("v_lshrrev_b32 v8, 5, v%d" % vlane)
    A("v_lshlrev_b32 v9, 8, v7")
    A("v_lshl_add_u32 v10, v8, 4, v9")
    A("s_lshl_b32 s%d, s%d, 2" % (sx, su))
    A("s_add_u32 s%d, s%d, s%d" % (sx + 1, sx, sj))
    A("s_lshl_b32 s%d, s%d, 19" % (sx + 1, sx + 1))
    A("s_add_u32 s%d, s%d, s%d" % (sx + 2, sx, sw))
    A("s_lshl_b32 s%d, s%d, 13" % (sx + 3, sx + 2))
    A("s_lshl_b32 s%d, s%d, 16" % (sx + 2, sx + 2))
    A("s_lshl_b32 s%d, s%d, 11" % (smk, sw))
    A("s_add_u32 s%d, s%d, 0x10000" % (smv, smk))
    A("s_mov_b32 s%d, s%d" % (sko, smk))
    A("s_mov_b32 s%d, s%d" % (svo, smk))
    A("s_mov_b32 s%d, 0x80000" % (sK + 2)); A("s_mov_b32 s%d, 0x20000" % (sK + 3))
    A("s_mov_b32 s%d, 0x80000" % (sV + 2)); A("s_mov_b32 s%d, 0x20000" % (sV + 3))
    A("s_mov_b32 s%d, 0x2000" % (sQ + 2)); A("s_mov_b32 s%d, 0x20000" % (sQ + 3))
    A("s_mov_b32 s%d, 0x2000" % (sO + 2)); A("s_mov_b32 s%d, 0x20000" % (sO + 3))
    A("s_mov_b32 s%d, 0x10000" % (sW + 2)); A("s_mov_b32 s%d, 0x20000" % (sW + 3))
    A("s_mov_b32 s%d, 0x100" % (sD + 2)); A("s_mov_b32 s%d, 0x20000" % (sD + 3))
    A("s_mov_b32 m0, s%d" % smk)
    A("s_waitcnt lgkmcnt(0)")
    A("s_add_u32 s%d, s6, s%d" % (sK, sx + 1)); A("s_addc_u32 s%d, s7, 0" % (sK + 1))
    def dmaK():
        return ["buffer_load_dwordx4 v%d, %s, s%d offen %s lds" % (KD, sr(sK, 4), sko, nt),
                "buffer_load_dwordx4 v%d, %s, s%d offen offset:1024 %s lds" % (KD + 1, sr(sK, 4), sko, nt)]
    def dmaV():
        return ["buffer_load_dwordx4 v%d, %s, s%d offen %s lds" % (VD, sr(sV, 4), svo, nt),
                "buffer_load_dwordx4 v%d, %s, s%d offen offset:1024 %s lds" % (VD, sr(sV, 4), svo, nt)]
    def m0K(slot): return "s_add_u32 m0, s%d, %d" % (smk, slot * 8192)
    def m0V(slot): return "s_add_u32 m0, s%d, %d" % (smv, slot * 8192)
    advK = "s_add_u32 s%d, s%d, 0x2000" % (sko, sko)
    advV = "s_add_u32 s%d, s%d, 0x2000" % (svo, svo)
    for x in dmaK(): A(x)
    A(advK)
    A("s_add_u32 s%d, s4, s%d" % (sQ, sx + 3)); A("s_addc_u32 s%d, s5, 0" % (sQ + 1))
    A("s_add_u32 s%d, s8, s%d" % (sV, sx + 1)); A("s_addc_u32 s%d, s9, 0" % (sV + 1))
    A("s_add_u32 s%d, s14, s%d" % (sW, sx + 2)); A("s_addc_u32 s%d, s15, 0" % (sW + 1))
    for kk in range(8):
        A("buffer_load_dwordx4 %s, v10, %s, 0 offen offset:%d" % (vr(Q + 4 * kk, 4), sr(sQ, 4), kk * 32))
    A("s_lshl_b32 s%d, s%d, 14" % (sx + 4, sj))
    A("v_mov_b32 v11, 0")
    A("v_lshlrev_b32 v12, 16, v%d" % vlane)
    A("buffer_store_dword v11, v12, %s, s%d offen offset:256 %s" % (sr(sW, 4), sx + 4, xs))
    for u in range(D):
        A(m0K((u + 1) % NS)); A("s_nop 0")
        for x in dmaK(): A(x)
        A(m0V(u % NS)); A(advK)
        for x in dmaV(): A(x)
        A(advV)
    A("s_add_u32 s%d, s10, s%d" % (sO, sx + 3)); A("s_addc_u32 s%d, s11, 0" % (sO + 1))
    A("s_mov_b32 s%d, s12" % sD); A("s_mov_b32 s%d, s13" % (sD + 1))
    A("s_mov_b32 s%d, 0x%08x" % (sc, f2u(C)))
    A("s_mov_b32 s%d, 0x%08x" % (sT, f2u(T / C)))
    A("v_and_b32 v11, 15, v7")
    A("v_xor_b32 v11, v8, v11")
    A("v_lshl_add_u32 v%d, v11, 4, v9" % KA)
    for kk in range(1, 8): A("v_xor_b32 v%d, %d, v%d" % (KA + kk, kk * 32, KA))
    A("v_bfe_u32 v11, v%d, 2, 2" % vlane)
    A("v_lshl_add_u32 v12, v8, 2, v11")
    A("v_lshlrev_b32 v12, 8, v12")
    A("v_xor_b32 v11, s%d, v11" % sj)
    A("v_lshl_add_u32 v12, v11, 6, v12")
    A("v_bfe_u32 v11, v%d, 4, 1" % vlane)
    A("v_lshl_add_u32 v12, v11, 5, v12")
    A("v_and_b32 v11, 3, v%d" % vlane)
    A("v_lshl_add_u32 v12, v11, 3, v12")
    A("v_add_u32 v%d, 0x10000, v12" % VA)
    for b in range(1, 4): A("v_xor_b32 v%d, %d, v%d" % (VA + b, b * 64, VA))
    for r in range(64): A("v_mov_b32 v%d, 0" % (O + r))
    for r in range(32): A("v_mov_b32 v%d, 0" % (VF + r))
    for r in range(8): A("v_mov_b32 v%d, 0" % (P + r))
    A("v_mov_b32 v%d, 0xff7fffff" % vm)
    A("v_mov_b32 v%d, 0xff7fffff" % vthr)
    A("v_mov_b32 v%d, 0" % vmc)
    A("v_mov_b32 v%d, 0" % vl0); A("v_mov_b32 v%d, 0" % vl1)
    A("s_mov_b32 s%d, 0" % scnt)
    A("s_waitcnt vmcnt(%d)" % (4 * D))
    A("s_barrier")
    stamp()
    def kread(kk, slot): return "ds_read_b128 %s, v%d offset:%d" % (vr(KF + 4 * kk, 4), KA + kk, slot * 8192)
    def vread(b, s, a, slot): return "ds_read_b64_tr_b16 %s, v%d offset:%d" % (vr(VF + (b * 2 + s) * 4 + 2 * a, 2), VA + b, slot * 8192 + s * 4096 + a * 2048)
    def qk(kk, S): return "v_mfma_f32_32x32x16_bf16 %s, %s, %s, %s" % (vr(S, 16), vr(KF + 4 * kk, 4), vr(Q + 4 * kk, 4), "0" if kk == 0 else vr(S, 16))
    def pv(b, s): return "v_mfma_f32_32x32x16_bf16 %s, %s, %s, %s" % (vr(O + 16 * b, 16), vr(VF + (b * 2 + s) * 4, 4), vr(P + 4 * s, 4), vr(O + 16 * b, 16))
    for kk in range(8): A(kread(kk, 0))
    A("s_lshl_b32 s%d, s%d, 2" % (sx, su))
    A("s_add_u32 s%d, s%d, s%d" % (sx, sx, sj))
    A("v_mov_b32 v11, 1")
    A("v_lshlrev_b32 v12, 8, v0")
    A("buffer_store_byte v11, v12, %s, s%d offen %s" % (sr(sD, 4), sx, xs))
    A("s_waitcnt lgkmcnt(0)")
    for kk in range(8): A(qk(kk, S0))
    A("s_nop 4")
    pro = out[i0:]
    A(".p2align 3")
    A("L_loop:")
    i1 = len(out)
    def step(k):
        Sc = S0 if k % 2 == 0 else S1
        Sn = S1 if k % 2 == 0 else S0
        A("s_waitcnt vmcnt(%d) lgkmcnt(0)" % (4 * (D - 1)))
        A("s_barrier")
        mx = ["v_max3_f32 v%d, v%d, v%d, v%d" % (vt, Sc, Sc + 1, Sc + 2)]
        for e in range(3, 15, 2): mx.append("v_max3_f32 v%d, v%d, v%d, v%d" % (vt, vt, Sc + e, Sc + e + 1))
        mx.append("v_max_f32 v%d, v%d, v%d" % (vt, vt, Sc + 15))
        dk, dv = dmaK(), dmaV()
        ks = (k + 1) % NS
        g1 = [[kread(0, ks), kread(1, ks)],
              [kread(2, ks), kread(3, ks), mx[0]],
              [kread(4, ks), kread(5, ks), mx[1]],
              [kread(6, ks), kread(7, ks), mx[2]],
              [m0K((k + D + 1) % NS), mx[3], mx[4], dk[0]],
              [mx[5], dk[1], m0V((k + D) % NS), mx[6]],
              [mx[7], dv[0], advK, "v_cmp_gt_f32 vcc, v%d, v%d" % (vt, vthr)],
              [dv[1], advV]]
        order = [(b, s) for s in range(2) for b in range(4)]
        for g in range(8):
            if not nocompute: A(pv(*order[g]))
            for x in g1[g]:
                if nocompute and not (x.startswith("buffer") or x.startswith("s_")):
                    A("s_nop 0"); continue
                A(x)
        if nocompute: return
        A("s_waitcnt lgkmcnt(0)")
        A("s_cbranch_vccnz L_rare%d" % k)
        A("L_ret%d:" % k)
        vreads = [vread(b, s, a, k % NS) for s in range(2) for b in range(4) for a in range(2)]
        nv = [3, 3, 3, 3, 2, 2, 0, 0]
        def fin(g):
            e = 2 * g
            return ["v_add_f32 v%d, v%d, v%d" % (vl0, vl0, Sc + e), "v_add_f32 v%d, v%d, v%d" % (vl1, vl1, Sc + e + 1),
                    "v_cvt_pk_bf16_f32 v%d, v%d, v%d" % (P + g, Sc + e, Sc + e + 1)]
        pos = 0
        for g in range(8):
            e = 2 * g
            A(qk(g, Sn))
            A("v_fma_f32 v%d, v%d, s%d, -v%d" % (Sc + e, Sc + e, sc, vmc))
            A("v_fma_f32 v%d, v%d, s%d, -v%d" % (Sc + e + 1, Sc + e + 1, sc, vmc))
            vs = vreads[pos:pos + nv[g]]; pos += nv[g]
            if vs: A(vs[0])
            A("v_exp_f32 v%d, v%d" % (Sc + e, Sc + e))
            if len(vs) > 1: A(vs[1])
            A("v_exp_f32 v%d, v%d" % (Sc + e + 1, Sc + e + 1))
            if len(vs) > 2: A(vs[2])
            if g > 0:
                for x in fin(g - 1): A(x)
        for x in fin(7): A(x)
    for k in range(NS):
        step(k)
    A("s_add_u32 s%d, s%d, 1" % (scnt, scnt))
    A("s_cmp_lt_u32 s%d, 8" % scnt)
    A("s_cbranch_scc1 L_loop")
    loop = out[i1:]
    i2 = len(out)
    stamp()
    A("s_waitcnt lgkmcnt(0)")
    A(pv(1, 0)); A(pv(1, 1))
    A("v_add_f32 v%d, v%d, v%d" % (vl0, vl0, vl1))
    A("s_lshl_b32 s%d, s%d, 2" % (sx, su))
    A("v_mov_b32 v%d, v%d" % (vl1, vl0))
    A("v_lshlrev_b32 v2, 4, v%d" % vlane)
    A(pv(2, 0)); A(pv(2, 1))
    A("v_permlane32_swap_b32 v%d, v%d" % (vl0, vl1))
    A("v_lshlrev_b32 v3, 2, v%d" % vlane)
    A("v_add_f32 v%d, v%d, v%d" % (vl0, vl0, vl1))
    A("v_cmp_gt_u32 vcc, 32, v%d" % vlane)
    A("v_mov_b32 v4, 0")
    A(pv(3, 0)); A(pv(3, 1))
    A("v_cndmask_b32 v5, v%d, v%d, vcc" % (vl0, vm))
    A("s_lshl_b32 s%d, s%d, 14" % (sx + 4, sj))
    if not noexch:
        A("buffer_load_dword v6, v4, %s, s%d offen %s" % (sr(sD, 4), sx, xl))
        A("buffer_store_dword v5, v3, %s, s%d offen %s" % (sr(sW, 4), sx + 4, xs))
    A(pv(0, 0)); A(pv(0, 1))
    A("s_add_u32 s%d, s%d, 0x1000" % (sx + 5, sx + 4))
    A("s_add_u32 s%d, s%d, 0x2000" % (sx + 6, sx + 4))
    A("s_add_u32 s%d, s%d, 0x3000" % (sx + 7, sx + 4))
    if not noexch:
        for b in range(1, 4):
            if b == 3: A("s_nop 1")
            for q4 in range(4):
                A("buffer_store_dwordx4 %s, v2, %s, s%d offen offset:%d %s" % (vr(O + 16 * b + 4 * q4, 4), sr(sW, 4), sx + 4 + b, q4 * 1024, xs))
        A("v_xor_b32 v7, s%d, v%d" % (sj, vlane))
        A("v_lshlrev_b32 v7, 14, v7")
        A("v_mov_b32 v8, 1")
        A("v_lshlrev_b32 v9, 16, v%d" % vlane)
        A("s_xor_b32 s%d, s%d, 0x5000" % (sx + 5, sx + 4))
        A("s_xor_b32 s%d, s%d, 0xa000" % (sx + 6, sx + 4))
        A("s_xor_b32 s%d, s%d, 0xf000" % (sx + 7, sx + 4))
        A("s_xor_b32 s%d, s%d, 0x4000" % (sx + 8, sx + 4))
        A("s_xor_b32 s%d, s%d, 0x8000" % (sx + 9, sx + 4))
        A("s_xor_b32 s%d, s%d, 0xc000" % (sx + 10, sx + 4))
        A("s_mov_b32 s63, 0x40000")
        A("s_waitcnt vmcnt(0)")
        stamp()
        A("buffer_store_dword v8, v9, %s, s%d offen offset:256 %s" % (sr(sW, 4), sx + 4, xs))
        A("L_chk:")
        A("v_readfirstlane_b32 s%d, v6" % (sx + 1))
        A("s_cmp_eq_u32 s%d, 0x01010101" % (sx + 1))
        A("s_cbranch_scc0 L_chkwait")
        A("L_poll:")
        A("buffer_load_dword v10, v7, %s, 0 offen offset:256 %s" % (sr(sW, 4), xl))
        A("s_waitcnt vmcnt(0)")
        A("v_cmp_eq_u32 vcc, 1, v10")
        A("s_and_b32 s%d, vcc_lo, 14" % (sx + 1))
        A("s_cmp_eq_u32 s%d, 14" % (sx + 1))
        A("s_cbranch_scc1 L_go")
        A("s_sub_u32 s63, s63, 1")
        A("s_cbranch_scc0 L_poll")
        A("L_go:")
        stamp()
        X = KF
        for b in range(1, 4):
            A("buffer_load_dword v%d, v3, %s, s%d offen %s" % (10 + b, sr(sW, 4), sx + 7 + b, xl))
        for b in range(1, 4):
            for q4 in range(4):
                A("buffer_load_dwordx4 %s, v2, %s, s%d offen offset:%d %s" % (vr(X + 16 * (b - 1) + 4 * q4, 4), sr(sW, 4), sx + 4 + b, q4 * 1024, xl))
        A("v_and_b32 v7, 31, v%d" % vlane)
        A("v_lshrrev_b32 v8, 5, v%d" % vlane)
        A("v_lshlrev_b32 v9, 8, v7")
        A("v_lshl_add_u32 v9, v8, 4, v9")
        A("s_lshl_b32 s%d, s%d, 6" % (sx + 1, sj))
        A("s_waitcnt vmcnt(12)")
        for b in range(1, 4): A("v_mov_b32 v%d, v%d" % (14 + b, 10 + b))
        A("s_nop 0")
        for b in range(1, 4): A("v_permlane32_swap_b32 v%d, v%d" % (10 + b, 14 + b))
        A("v_max3_f32 v18, v11, v12, v13")
        A("v_max_f32 v18, v18, v%d" % vm)
        A("v_sub_f32 v10, v%d, v18" % vm)
        for b in range(1, 4): A("v_sub_f32 v%d, v%d, v18" % (10 + b, 10 + b))
        for b in range(0, 4): A("v_mul_f32 v%d, s%d, v%d" % (10 + b, sc, 10 + b))
        for b in range(0, 4): A("v_exp_f32 v%d, v%d" % (10 + b, 10 + b))
        A("v_mul_f32 v14, v%d, v10" % vl0)
        for b in range(1, 4): A("v_fmac_f32 v14, v%d, v%d" % (14 + b, 10 + b))
        A("v_rcp_f32 v14, v14")
        A("s_nop 0")
        for b in range(0, 4): A("v_mul_f32 v%d, v14, v%d" % (10 + b, 10 + b))
        for r in range(16): A("v_mul_f32 v%d, v10, v%d" % (O + r, O + r))
        for b in range(1, 4):
            A("s_waitcnt vmcnt(%d)" % (4 * (3 - b)))
            for r in range(16): A("v_fmac_f32 v%d, v%d, v%d" % (O + r, 10 + b, X + 16 * (b - 1) + r))
        stamp()
        for t in range(8): A("v_cvt_pk_bf16_f32 v%d, v%d, v%d" % (20 + t, O + 2 * t, O + 2 * t + 1))
        A("s_nop 0")
        A("v_permlane32_swap_b32 v20, v22"); A("v_permlane32_swap_b32 v21, v23")
        A("v_permlane32_swap_b32 v24, v26"); A("v_permlane32_swap_b32 v25, v27")
        A("buffer_store_dwordx4 v[20:23], v9, %s, s%d offen" % (sr(sO, 4), sx + 1))
        A("buffer_store_dwordx4 v[24:27], v9, %s, s%d offen offset:32" % (sr(sO, 4), sx + 1))
    if diag:
        A("s_waitcnt vmcnt(0)")
        stamp()
        A("s_waitcnt lgkmcnt(0)")
        A("s_add_u32 s56, s14, 0x2000000"); A("s_addc_u32 s57, s15, 0"); A("s_mov_b32 s58, 0x100000"); A("s_mov_b32 s59, 0x20000")
        A("s_lshl_b32 s60, s2, 2"); A("s_add_u32 s60, s60, s%d" % sw); A("s_lshl_b32 s60, s60, 6")
        A("v_lshlrev_b32 v9, 20, v%d" % vlane)
        for k in range(stamps[0]):
            A("v_mov_b32 v10, s%d" % (64 + 2 * k))
            A("buffer_store_dword v10, v9, s[56:59], s60 offen offset:%d" % (4 * k))
        A("s_getreg_b32 s61, hwreg(HW_REG_XCC_ID)")
        A("v_mov_b32 v10, s61")
        A("buffer_store_dword v10, v9, s[56:59], s60 offen offset:60")
    epi = out[i2:]
    A("L_end:")
    A("s_endpgm")
    if not noexch:
        A("L_chkwait:")
        A("s_sleep 2")
        A("buffer_load_dword v6, v4, %s, s%d offen %s" % (sr(sD, 4), sx, xl))
        A("s_waitcnt vmcnt(0)")
        A("s_sub_u32 s63, s63, 1")
        A("s_cbranch_scc0 L_chk")
        A("s_branch L_go")
    i3 = len(out)
    if not nocompute:
        for k in range(NS):
            A("L_rare%d:" % k)
            A("s_call_b64 %s, L_rescale" % sr(sret, 2))
            A("s_branch L_ret%d" % k)
        i3 = len(out)
        A("L_rescale:")
        A("v_mov_b32 v%d, v%d" % (vx, vt))
        A("s_nop 1")
        A("v_permlane32_swap_b32 v%d, v%d" % (vt, vx))
        A("v_max3_f32 v%d, v%d, v%d, v%d" % (vt, vt, vx, vm))
        A("v_sub_f32 v%d, v%d, v%d" % (vx, vm, vt))
        A("v_mul_f32 v%d, s%d, v%d" % (vx, sc, vx))
        A("v_exp_f32 v%d, v%d" % (vx, vx))
        A("v_mov_b32 v%d, v%d" % (vm, vt))
        A("v_mul_f32 v%d, s%d, v%d" % (vmc, sc, vt))
        A("v_add_f32 v%d, s%d, v%d" % (vthr, sT, vt))
        A("v_mul_f32 v%d, v%d, v%d" % (vl0, vx, vl0))
        A("v_mul_f32 v%d, v%d, v%d" % (vl1, vx, vl1))
        A("s_nop 3")
        for r in range(64): A("v_mul_f32 v%d, v%d, v%d" % (O + r, vx, O + r))
        A("s_setpc_b64 %s" % sr(sret, 2))
    resc = out[i3:]
    A('.section .rodata,"a"'); A(".p2align 6")
    A(".amdhsa_kernel " + KN)
    A("  .amdhsa_next_free_vgpr 256"); A("  .amdhsa_next_free_sgpr 96"); A("  .amdhsa_accum_offset 256")
    A("  .amdhsa_group_segment_fixed_size 0"); A("  .amdhsa_kernarg_size 48"); A("  .amdhsa_user_sgpr_count 2")
    A("  .amdhsa_user_sgpr_kernarg_segment_ptr 1"); A("  .amdhsa_system_sgpr_workgroup_id_x 1")
    A("  .amdhsa_float_denorm_mode_32 3")
    A(".end_amdhsa_kernel")
    bad = hazard.check(pro + loop + loop + epi, "main")
    if not nocompute:
        l2 = []
        for x in loop:
            l2.append(x)
            if x.startswith("s_cbranch_vccnz"): l2 += ["s_nop 0"] + resc + ["s_nop 0"]
        bad += hazard.check(pro + l2 + l2 + epi, "rare")
    assert bad == 0
    return "\n".join(out) + "\n"

if __name__ == "__main__":
    import json
    cfgs = {
        "k_base": dict(),
        "k_diag": dict(diag=True),
        "k_d4": dict(D=4),
        "k_noexch": dict(noexch=True),
        "k_nocomp": dict(nocompute=True),
    }
    for n, c in cfgs.items(): open(n + ".s", "w").write(gen(**c))
    print(json.dumps(["work/" + n + ".s" for n in cfgs]))
```
